```python
import torch

def _softmax(x, axis=-1):
    return torch.softmax(x, dim=axis)
def _gelu(x):
    return torch.nn.functional.gelu(x, approximate="tanh")
def _silu(x):
    return torch.nn.functional.silu(x)
def _sigmoid(x):
    return torch.sigmoid(x)
def _layernorm(x, axis=-1, eps=1e-5):
    m = x.mean(dim=axis, keepdim=True)
    v = x.var(dim=axis, keepdim=True, unbiased=False)
    return (x - m) / torch.sqrt(v + eps)
def _scatter_add(tgt, idx, src, axis=0):
    return tgt.clone().index_add_(axis, idx, src)
def _segment_sum(src, seg, n):
    out = torch.zeros((n,) + src.shape[1:], dtype=src.dtype)
    return out.index_add_(0, seg, src)
def _pad(x, pw):
    flat = tuple(v for pair in reversed(pw) for v in pair)
    return torch.nn.functional.pad(x, flat)

kernel_name = 'standalone__mha_softmax__near_ridge'

def setup_inputs():

    _w = (lambda a: (lambda t: t.to(torch.bfloat16) if t.is_floating_point() else t)(torch.as_tensor(a)))
    B, H, Sq, Sk, D = 16, 32, 368, 1024, 128
    return {
        "q": _w((lambda *s: torch.randn(*s, dtype=torch.bfloat16) * 0.8)(B, H, Sq, D)),
        "k": _w((lambda *s: torch.randn(*s, dtype=torch.bfloat16) * 0.8)(B, H, Sk, D)),
        "v": _w((lambda *s: torch.randn(*s, dtype=torch.bfloat16) * 0.05)(B, H, Sk, D)),
    }

def reference(q, k, v):
    scale = q.shape[-1] ** -0.5
    scores = torch.einsum("bhqd,bhkd->bhqk", q, k) * scale
    p = _softmax(scores, axis=-1)
    return torch.einsum("bhqk,bhkd->bhqd", p, v)
```

```python
import re
TRANS = ("v_exp_f32", "v_rcp_f32", "v_log_f32", "v_rsq_f32", "v_sqrt_f32")

def regs_of(op):
    op = op.strip()
    op = op.lstrip("-")
    if op.startswith("|") and op.endswith("|"): op = op[1:-1]
    m = re.fullmatch(r"([vas])\[(\d+):(\d+)\]", op)
    if m: return [f"{m.group(1)}{i}" for i in range(int(m.group(2)), int(m.group(3)) + 1)]
    m = re.fullmatch(r"([vas])(\d+)", op)
    if m: return [op]
    if op in ("vcc", "m0", "exec"): return [op]
    return []

class I:
    def __init__(s, text, tag=None):
        s.text = text; s.tag = tag
        s.rd = set(); s.wr = set(); s.C = set(); s.AB = set(); s.kind = "other"; s.ws = 1
        t = text.split(";")[0].strip()
        if not t or t.endswith(":") or t.startswith("."):
            s.kind = "label"; s.ws = 0; s.mn = ""; return
        mn, _, rest = t.partition(" ")
        s.mn = mn
        ops = [o.strip() for o in rest.split(",")] if rest.strip() else []
        if ops: ops[-1], *mods = ops[-1].split(" ")
        else: mods = []
        s.mods = mods
        R = [regs_of(o) for o in ops]
        if mn.startswith("v_mfma"):
            s.kind = "mfma"; s.passes = 8 if "32x32" in mn else 4
            s.wr = set(R[0]); s.AB = set(R[1]) | set(R[2]); s.C = set(R[3]); s.rd = s.AB | s.C
            s.D = ops[0]; s.Cop = ops[3]
        elif mn.startswith("v_"):
            s.kind = "trans" if mn.replace("_e32", "").replace("_e64", "") in TRANS else "valu"
            s.wr = set(R[0]); s.rd = set(sum(R[1:], []))
            if "swap" in mn: s.wr |= set(R[1]); s.rd |= set(R[0])
            if "fmac" in mn: s.rd |= set(R[0])
        elif mn.startswith("ds_read"):
            s.kind = "ds"; s.wr = set(R[0]); s.rd = set(R[1])
        elif mn.startswith("ds_write"):
            s.kind = "ds"; s.rd = set(sum(R, []))
        elif mn.startswith("buffer_load"):
            s.kind = "vmem"
            if "lds" in mods: s.rd = set(sum(R, [])) | {"m0"}; s.dma = True
            else: s.wr = set(R[0]); s.rd = set(sum(R[1:], []))
        elif mn.startswith("buffer_store"):
            s.kind = "vmem"; s.rd = set(sum(R, [])); s.store = set(R[0]); s.wide = "x4" in mn or "x3" in mn
        elif mn == "s_nop":
            s.kind = "nop"; s.ws = int(ops[0]) + 1
        elif mn == "s_waitcnt":
            s.kind = "wait"
            m = re.search(r"vmcnt\((\d+)\)", t); s.vm = int(m.group(1)) if m else None
            m = re.search(r"lgkmcnt\((\d+)\)", t); s.lg = int(m.group(1)) if m else None
        elif mn == "s_barrier": s.kind = "barrier"
        elif mn.startswith("s_load") or mn in ("s_memtime", "s_memrealtime"):
            s.kind = "smem"; s.wr = set(R[0]); s.rd = set(sum(R[1:], []))
        elif mn.startswith("s_"):
            s.kind = "salu"
            if mn.startswith("s_cmp") or mn.startswith("s_cbranch") or mn.startswith("s_branch") or mn in ("s_endpgm", "s_setprio"):
                s.rd = set(sum(R, []))
            else:
                s.wr = set(R[0]); s.rd = set(sum(R[1:], []))
        else:
            raise Exception("unknown instr " + text)
    def __repr__(s): return s.text

def isv(x): return x.kind in ("valu", "trans")
def need(p, c):
    n = 0
    if isv(p):
        vw = {r for r in p.wr if r[0] in "va" and r != "vcc"}
        sw = p.wr - vw
        if c.kind == "mfma" and vw & c.rd: n = max(n, 2)
        if isv(c) and "permlane" in c.mn and vw & c.rd: n = max(n, 2)
        if isv(c) and ("readfirstlane" in c.mn or "readlane" in c.mn) and vw & c.rd: n = max(n, 1)
        if isv(c) and sw & c.rd: n = max(n, 2)
        if c.kind == "vmem" and sw & c.rd: n = max(n, 5)
        if p.kind == "trans" and c.kind == "valu" and vw & c.rd: n = max(n, 1)
    if p.kind == "mfma":
        big = p.passes == 8
        if c.kind == "mfma":
            if p.wr & c.AB: n = max(n, 12 if big else 8)
            if p.wr & c.C and not (p.D == c.Cop and p.passes == c.passes): n = max(n, 10 if big else 6)
            if p.wr & c.wr and not (p.D == c.D and p.passes == c.passes): n = max(n, 10 if big else 6)
        elif c.kind in ("valu", "trans", "ds", "vmem"):
            if p.wr & (c.rd | c.wr): n = max(n, 12 if big else 8)
            if p.C & c.wr: n = max(n, 7 if big else 3)
    if p.kind == "salu" and "m0" in p.wr and getattr(c, "dma", False): n = max(n, 1)
    if p.kind == "vmem" and getattr(p, "wide", False) and p.store & c.wr: n = max(n, 2)
    return n

def short_states(prev, c):
    miss = 0; d = 0
    for p in reversed(prev):
        if p.kind == "label": continue
        n = need(p, c)
        if n > d: miss = max(miss, n - d)
        d += p.ws
        if d >= 12: break
    return miss

def fix(seq, prev=(), lg=None, vm=None):
    out = []
    lg = list(lg or []); vm = list(vm or [])
    prev = list(prev)
    for c in seq:
        if c.kind == "label": out.append(c); continue
        touch = c.rd | c.wr
        for q, nm in ((lg, "lgkmcnt"), (vm, "vmcnt")):
            idx = [k for k, p in enumerate(q) if p.wr & touch]
            if idx:
                n = len(q) - 1 - idx[-1]
                n = min(n, 15 if nm == "lgkmcnt" else 63)
                out.append(I(f"s_waitcnt {nm}({n})")); del q[: len(q) - n]
        m = short_states((prev + out)[-16:], c)
        if m: out.append(I(f"s_nop {m-1}"))
        out.append(c)
        if c.kind == "ds": lg.append(c)
        if c.kind == "vmem": vm.append(c)
        if c.kind == "wait":
            if c.lg is not None: del lg[: max(0, len(lg) - c.lg)]
            if c.vm is not None: del vm[: max(0, len(vm) - c.vm)]
    return out

def check(trace, name=""):
    lg = []; vm = []; errs = 0
    landed = set(); published = set(); cur = {}
    rd_done_bar = {}
    pend_reads = {}
    def err(k, msg):
        nonlocal errs
        errs += 1
        if errs < 20: print(f"[{name}] @{k} {trace[k].text!r}: {msg}")
    for k, c in enumerate(trace):
        if c.kind == "label": continue
        m = short_states(trace[max(0, k - 24):k], c)
        if m: err(k, f"short {m} wait states")
        touch = c.rd | c.wr
        for p in lg + vm:
            if p.wr & touch: err(k, f"touches pending load {p.text}")
        t = c.tag
        if t:
            if t[0] == "dma":
                if pend_reads.get(t[1]): err(k, f"DMA into {t[1]} while reads not barriered")
                cur[t[1]] = t[2]
            if t[0] == "rd":
                if (t[1], t[2]) not in published: err(k, f"read of unpublished {t}")
                if cur.get(t[1]) != t[2]: err(k, f"read of overwritten/wrong version {t} cur={cur.get(t[1])}")
                pend_reads[t[1]] = True
            if t[0] in ("pdma", "pwr"):
                for p in lg:
                    if p.tag and p.tag[0] == "prd" and p.tag[1] == t[1] and t[0] == "pdma": err(k, "private DMA over pending read")
                for p in vm:
                    if p.tag and p.tag[0] == "pdma" and p.tag[1] == t[1] and p.tag[2] != t[2]: err(k, "private write over pending DMA")
                cur[t[1]] = t[2]
            if t[0] == "prd":
                if cur.get(t[1]) != t[2]: err(k, f"private read wrong version {t} cur={cur.get(t[1])}")
                for p in vm:
                    if p.tag and p.tag[0] == "pdma" and p.tag[1] == t[1]: err(k, "private read before DMA landed")
        if c.kind in ("ds", "smem"): lg.append(c)
        if c.kind == "vmem":
            vm.append(c)
            if len(vm) > 63: err(k, "vmcnt overflow")
        if c.kind == "wait":
            if c.lg is not None:
                if any(p.kind == "smem" for p in lg) and c.lg != 0: err(k, "counted lgkm wait with smem pending")
                del lg[: max(0, len(lg) - c.lg)]
            if c.vm is not None: del vm[: max(0, len(vm) - c.vm)]
        if c.kind == "barrier":
            pend = {(p.tag[1], p.tag[2]) for p in vm if p.tag and p.tag[0] == "dma"}
            for r, v in cur.items():
                if (r, v) not in pend: published.add((r, v))
            busy = {p.tag[1] for p in lg if p.tag and p.tag[0] == "rd"}
            for r in list(pend_reads):
                if r not in busy: pend_reads[r] = False
    print(f"[{name}] checked {len(trace)} instrs, {errs} errors")
    return errs
```

```python
import sys, math, struct
from asmlib import *

class Cfg:
    omode = "trickle"
    stamps = False
    nodma = False; nobar = False; nolds = False; nosm = False
    nt = ""
    nheads = 2
    def __init__(s, **kw):
        for k, v in kw.items(): setattr(s, k, v)

PIECE = 1056; SLOT = 8 * PIECE; HEADQ = 94208
KBASE = HEADQ; VBASE = KBASE + 4 * SLOT; DUMMY = VBASE + 4 * SLOT; LDS = DUMMY + 1024
MF = "v_mfma_f32_16x16x32_bf16"; MF32 = "v_mfma_f32_32x32x16_bf16"
def rr(f, x, n): return f"{f}[{x}:{x+n-1}]" if n > 1 else f"{f}{x}"
def vr(x, n=4): return rr("v", x, n)
def ar(x, n=4): return rr("a", x, n)
aO = lambda qt, dt: (qt * 8 + dt) * 4
aL = lambda qt: 192 + 4 * qt
aK = lambda kt, s: 216 + 16 * kt + 4 * s
aONE = 248; aZ = 252
vLin, vKa, vVa, vXa, vQr, vOw = 1, 2, 3, 4, 5, 6
vSw = lambda n: 8 + n
vT = 12
vQ = lambda qt, s: 16 + 16 * qt + 4 * s
vP = lambda b, qt: 112 + 24 * b + 4 * qt
vC = lambda qt: 160 + 4 * qt
vS = lambda b: 184 + 4 * b
vV = lambda dt: 200 + 4 * (dt % 4)
vTmp = 216
sK, sV, sQ, sO0, sO = 4, 8, 12, 16, 20
sKo, sVo, sT, sTm, sCnt, sHead, sFlag, sW, sMw, sXw = 24, 25, 26, 27, 28, 29, 30, 31, 32, 33
sSc, sMask, sTend, sDum, sBig, sTmp, sNq = 34, 36, 37, 38, 39, 40, 44
sStamp = 56
def srd(b): return f"s[{b}:{b+3}]"
SCALE = struct.unpack("<I", struct.pack("<f", math.log2(math.e) / math.sqrt(128.0)))[0]
LIMIT = 0x4b800000

SCHED = {
 6: dict(bar=60, ones=[63, 67, 71, 75, 79, 83],
         rd={1: "V2b", 5: "V3a", 9: "V3b", 13: "KB0", 17: "KB1", 21: "KB2", 25: "KB3", 29: "V4a", 33: "V4b", 37: "V5a", 39: "V5b",
             43: "V6a", 45: "V6b", 49: "V7a", 51: "V7b",
             61: "KA0", 65: "KA1", 69: "KA2", 73: "KA3", 77: "V0a", 81: "V0b", 85: "V1a", 89: "V1b", 93: "V2a"}),
 5: dict(bar=52, ones=[55, 59, 63, 67, 71],
         rd={1: "V2b", 5: "V3a", 7: "V3b", 9: "KB0", 11: "KB1", 13: "KB2", 17: "KB3", 19: "V4a", 21: "V4b", 25: "V5a", 27: "V5b",
             33: "V6a", 35: "V6b", 41: "V7a", 43: "V7b",
             53: "KA0", 57: "KA1", 59: "KA2", 61: "KA3", 63: "V0a", 65: "V0b", 69: "V1a", 73: "V1b", 75: "V2a"}),
}

class Gen:
    def __init__(s, cfg, NQ):
        s.c = cfg; s.NQ = NQ; s.NP = 4 * NQ; s.sfx = f"_{NQ}"; s.nst = 0
    def kread(s, j, kt, st):
        return I(f"ds_read_b128 {ar(aK(kt, st))}, v{vKa} offset:{(j % 4) * SLOT + kt * 256 + st * 64}", ("rd", f"K{j%4}", j))
    def vread(s, j, dt, h):
        return I(f"ds_read_b64_tr_b16 {vr(vV(dt) + 2 * h, 2)}, v{vVa} offset:{(j % 4) * SLOT + h * 256 + dt * 32}", ("rd", f"V{j%4}", j))
    def rd(s, name, gi, post):
        if name[0] == "K": return s.kread(gi + (2 if name[1] == "A" else 1), 0 if name[1] == "A" else 1, int(name[2]))
        return s.vread(gi + (1 if post else 0), int(name[1]), 0 if name[2] == "a" else 1)
    def dma(s, which, j, e):
        base = (KBASE if which == "K" else VBASE) + (j % 4) * SLOT + 32 * e
        so = sKo if which == "K" else sVo
        return ([I(f"s_add_u32 m0, s{sMw}, {base}")],
                I(f"buffer_load_dwordx4 v{vLin}, {srd(sK if which == 'K' else sV)}, s{so} offen offset:{1024*e}{s.c.nt} lds", ("dma", f"{which}{j%4}", j)))
    def dummy(s):
        return ([I(f"s_mov_b32 m0, s{sDum}")], I(f"buffer_load_dwordx4 v{vLin}, {srd(sQ)}, s{sBig} offen lds"))
    def adv(s): return [I(f"s_add_u32 s{sKo}, s{sKo}, 8192"), I(f"s_add_u32 s{sVo}, s{sVo}, 8192")]
    def sbuf(s, gi, c): return vS((((gi + 1) % 4) * 2 * s.NQ + c) % 4)
    def qk(s, d, kt, qt, st, cinit):
        return I(f"{MF} {vr(d)}, {ar(aK(kt, st))}, {vr(vQ(qt, st))}, {cinit if st == 0 else vr(d)}")
    def pv(s, i, dt, qt): return I(f"{MF} {ar(aO(qt, dt))}, {vr(vV(dt))}, {vr(vP(i % 2, qt))}, {ar(aO(qt, dt))}")
    def ones(s, i, qt): return I(f"{MF} {ar(aL(qt))}, {ar(aONE)}, {vr(vP(i % 2, qt))}, {ar(aL(qt))}")
    def ex(s, r): return I(f"v_exp_f32 v{r}, v{r}")
    def cvt(s, d, a): return I(f"v_cvt_pk_bf16_f32 v{d}, v{a}, v{a+1}")
    def stamp(s, k):
        if not s.c.stamps: return []
        return [I(f"s_waitcnt lgkmcnt(0)"), I(f"s_mov_b64 s[{sStamp+2*k+16}:{sStamp+2*k+17}], s[{sStamp+2*k}:{sStamp+2*k+1}]"),
                I(f"s_memtime s[{sStamp+2*k}:{sStamp+2*k+1}]"), I("s_waitcnt lgkmcnt(0)")]
    def group(s, gi, T):
        g = [s.dma("K", gi + 5, 0), s.dma("K", gi + 5, 1), s.dma("V", gi + 4, 0), s.dma("V", gi + 4, 1), T]
        return g
    def step_raw(s, gi, phase):
        NQ = s.NQ; sc = SCHED[NQ]; nb = 16 * NQ; i = gi % 32; p = (gi + 1) % 4
        pre = [[] for _ in range(nb)]; mid = [[] for _ in range(nb)]; post = [[] for _ in range(nb)]
        mf = []
        for c in range(2 * NQ):
            kt, qt = divmod(c, NQ)
            for st in range(4): mf.append(s.qk(s.sbuf(gi, c), kt, qt, st, vr(vC(qt))))
            for m in range(4 * c, 4 * c + 4): mf.append(s.pv(gi, *divmod(m, NQ)))
            if c == 0: sb = s.sbuf(gi - 1, 2 * NQ - 1); d = vP(gi % 2, NQ - 1) + 2
            else: sb = s.sbuf(gi, c - 1); d = vP((gi + 1) % 2, (c - 1) % NQ) + 2 * ((c - 1) // NQ)
            if not s.c.nosm:
                for e in range(4): mid[8 * c + 2 * e].append(s.ex(sb + e))
                mid[8 * c + 3].append(s.cvt(d, sb)); mid[8 * c + 7].append(s.cvt(d + 1, sb + 2))
        if not s.c.nolds:
            for b, nm in sc["rd"].items(): pre[b].append(s.rd(nm, gi, b > sc["bar"]))
        if phase == 0:
            T = ([I(f"s_cmp_lt_u32 s{sTm}, s{sTend}"), I(f"s_cselect_b32 m0, s{sTm}, s{sDum}")],
                 I(f"buffer_load_dwordx4 v{vSw(i % 4)}, {srd(sQ)}, s{sT} offen lds", ("pdma", f"X{i//4}", "Q1") if (i < s.NP and gi < 32) else None))
            pre[2] += [I(f"s_add_u32 s{sT}, s{sT}, 1024"), I(f"s_add_u32 s{sTm}, s{sTm}, 1024")]
        else:
            pre[3].append(I(f"ds_read_b128 {vr(vT)}, v{vXa} offset:{(i % 4) * 1024}", ("prd", f"X{i//4}", "O0") if i < s.NP else None))
            T = ([], I(f"buffer_store_dwordx4 {vr(vT)}, v{vSw(i % 4)}, {srd(sO0)}, s{sT} offen"))
            pre[2] += [I(f"s_add_u32 s{sT}, s{sT}, 1024")]
            if i % 4 == 3: mid[5].append(I(f"v_add_u32 v{vXa}, 0x1000, v{vXa}"))
        if not s.c.nobar:
            pre[sc["bar"]] += [I("s_waitcnt vmcnt(10) lgkmcnt(0)"), I("s_barrier")]
        g = s.group(gi, T)
        for k, b in enumerate(sc["ones"]):
            post[b].append(s.ones(gi, k))
            if k < len(g) and not s.c.nodma:
                pre[b - 1] += g[k][0]; post[b].append(g[k][1])
        pre[4] += s.adv()
        if p == 3:
            pre[nb - 4].append(I(f"s_sub_u32 s{sCnt}, s{sCnt}, 1"))
            pre[nb - 2].append(I(f"s_cmp_lg_u32 s{sCnt}, 0"))
        out = []
        for b in range(nb):
            mf[b].even = (b % 2 == 0)
            out += [mf[b]] + pre[b] + mid[b] + post[b]
        return out
    def step(s, gi, phase):
        a, b, c = s.step_raw(gi - 1, phase), s.step_raw(gi, phase), s.step_raw(gi + 1, phase)
        seq = a + b + c; ins = {}
        lg = []
        for k, x in enumerate(seq):
            touch = x.rd | x.wr
            idx = [j for j in lg if seq[j].wr & touch]
            if idx:
                j = idx[-1]; q = k - 1
                while not (seq[q].kind == "mfma" and getattr(seq[q], "even", False)): q -= 1
                assert q > j, (seq[j], x)
                n = sum(1 for t in lg if j < t <= q)
                ins[q] = n; lg = [t for t in lg if t > j]
            if x.kind == "ds": lg.append(k)
            if x.kind == "wait" and x.lg is not None: lg = lg[len(lg) - x.lg:] if x.lg else []
        out = []
        for k in range(len(a), len(a) + len(b)):
            out.append(seq[k])
            if k in ins: out.append(I(f"s_waitcnt lgkmcnt({ins[k]})"))
        return out
    def tail(s, gi, prev):
        NQ = s.NQ; sc = SCHED[NQ]
        mf = [s.ones(gi, k) for k in range(NQ - 1)] + [s.pv(gi, *divmod(m, NQ)) for m in range(8 * NQ)] + [s.ones(gi, NQ - 1)]
        o = NQ - 1
        fl = [[] for _ in mf]
        sb = s.sbuf(gi - 1, 2 * NQ - 1); d = vP(gi % 2, NQ - 1) + 2
        for e in range(4): fl[e].append(s.ex(sb + e))
        fl[4].append(s.cvt(d, sb)); fl[4].append(s.cvt(d + 1, sb + 2))
        names = [sc["rd"][b] for b in sorted(sc["rd"])]
        pre = [n for b, n in sorted(sc["rd"].items()) if b < sc["bar"]]
        post = [n for b, n in sorted(sc["rd"].items()) if b > sc["bar"] and n[0] == "V"]
        k = 5
        for n in pre:
            if n[0] == "V" and int(n[1]) >= 4: k = max(k, o + (int(n[1]) - 3) * NQ - 1)
            fl[k].insert(0, s.rd(n, gi, False)); k += 1
        k += 7
        fl[k] += s.adv() + [I("s_waitcnt vmcnt(10) lgkmcnt(0)"), I("s_barrier")]
        k += 1
        kk = k
        for m0, ld in s.group(gi, s.dummy()):
            fl[kk] += m0; fl[kk + 1].append(ld); kk += 2
        for n in post:
            k = max(k, o + (int(n[1]) + 5) * NQ - 1)
            while fl[k] and fl[k][-1].kind in ("vmem", "ds") and k < len(mf) - 1: k += 1
            fl[k].insert(0, s.rd(n, gi, True)); k = min(k + 1, len(mf) - 1)
        seq = []
        for m, f in zip(mf, fl): seq += [m] + f
        lg = []
        for x in prev:
            if x.kind == "ds": lg.append(x)
            if x.kind == "wait" and x.lg is not None: lg = lg[len(lg) - x.lg:] if x.lg else []
        return fix(seq, prev[-16:], lg)
    def secA(s, h):
        NQ = s.NQ; L = []
        for st in range(4): L.append(I(f"v_xor_b32 v{vTmp+st}, {64*st}, v{vQr}"))
        def reads(qt):
            return [I(f"s_waitcnt vmcnt({15 + 4*(NQ-1-qt)})")] + \
                   [I(f"ds_read_b128 {vr(vQ(qt, st))}, v{vTmp+st} offset:{qt*4096}", ("prd", f"X{qt}", f"Q{h}")) for st in range(4)]
        L += reads(0)
        t = vTmp + 4
        for qt in range(NQ):
            if qt + 1 < NQ: L += reads(qt + 1)
            for st in range(4):
                r = vQ(qt, st)
                for e in range(4):
                    L.append(I(f"v_lshlrev_b32 v{t+2*e}, 16, v{r+e}")); L.append(I(f"v_and_b32 v{t+2*e+1}, s{sMask}, v{r+e}"))
                for e in range(4): L.append(I(f"v_pk_mul_f32 {vr(t+2*e,2)}, {vr(t+2*e,2)}, s[{sSc}:{sSc+1}]"))
                for e in range(4): L.append(s.cvt(r + e, t + 2 * e))
        return fix(L)
    def zeroO(s, qt):
        return [I(f"{MF32} {ar(aO(qt, 4*e), 16)}, {ar(aZ)}, {ar(aZ)}, 0") for e in range(2)]
    def ostore(s, qt, h, r):
        L = [I(f"ds_read_b128 {vr(r + 4*e)}, v{vXa} offset:{qt*4096 + e*1024}", ("prd", f"X{qt}", f"O{h}")) for e in range(4)]
        L2 = [I(f"s_add_u32 s{sT}, s{sT}, 4096")] + \
             [I(f"buffer_store_dwordx4 {vr(r + 4*e)}, v{vSw(e)}, {srd(sO)}, s{sT} offen offset:{e*1024}") for e in range(4)]
        return L, L2
    def secB(s, h, prev):
        NQ = s.NQ; L = []; burst = s.c.omode == "burst"
        a = vP(0, 0)
        rl = a + 8
        for dt in range(8): L.append(I(f"v_xor_b32 v{a+dt}, {32*dt}, v{vOw}"))
        for qt in range(NQ): L.append(I(f"v_accvgpr_read_b32 v{rl+2*qt}, a{aL(qt)}"))
        L.append(I(f"s_mov_b64 s[{sTmp}:{sTmp+1}], 0"))
        for qt in range(NQ):
            L.append(I(f"v_cmp_nle_f32 vcc, v{rl+2*qt}, v{7}"))
            L.append(I(f"v_rcp_f32 v{rl+2*qt}, v{rl+2*qt}"))
            L.append(I(f"s_or_b64 s[{sTmp}:{sTmp+1}], s[{sTmp}:{sTmp+1}], vcc"))
            L.append(I(f"v_accvgpr_write_b32 a{aL(qt)}, 0"))
        L += [I(f"s_cmp_lg_u64 s[{sTmp}:{sTmp+1}], 0"), I(f"s_cselect_b32 s{sTmp}, 1, 0"), I(f"s_lshl_b32 s{sTmp}, s{sTmp}, s{sHead}"),
              I(f"s_or_b32 s{sFlag}, s{sFlag}, s{sTmp}")]
        if burst:
            L += [I(f"s_mul_i32 s{sT}, s{sHead}, {HEADQ}"), I(f"s_sub_u32 s{sT}, s{sT}, 4096")]
        pend = None
        for qt in range(NQ):
            for d2 in range(4):
                t = vTmp + 12 * (d2 % 2)
                for e in range(8): L.append(I(f"v_accvgpr_read_b32 v{t+e}, a{aO(qt, 2*d2)+e}"))
                for e in range(4): L.append(I(f"v_pk_mul_f32 {vr(t+2*e,2)}, {vr(t+2*e,2)}, {vr(rl+2*qt,2)} op_sel_hi:[1,0]"))
                for e in range(4): L.append(s.cvt(t + 8 + e, t + 2 * e))
                for e in range(2): L.append(I(f"ds_write_b64 v{a+2*d2+e}, {vr(t+8+2*e,2)} offset:{qt*4096}", ("pwr", f"X{qt}", f"O{h}")))
                if d2 == 1 and pend: L += pend; pend = None
            L += s.zeroO(qt)
            if burst:
                r1, pend = s.ostore(qt, h, vTmp + 24)
                L += r1
        if pend: L += pend
        return fix(L, prev[-16:])
    def final(s):
        L = []
        if s.c.omode != "burst":
            L += [I(f"s_mov_b32 s{sT}, {HEADQ - 4096}"), I(f"v_lshlrev_b32 v{vXa}, 0, v{vLin}"), I(f"v_add_u32 v{vXa}, s{sXw}, v{vXa}")]
            st = []
            for qt in range(s.NQ):
                r1, r2 = s.ostore(qt, 1, vQ(qt, 0))
                L += r1
                if qt >= 2: L += st[qt - 2]
                st.append(r2)
            L += st[-2] + st[-1]
        return fix(L)
    def secC(s, h):
        NQ = s.NQ; gi = 32 * h - 1; L = []
        raw = lambda qt: vP(1, qt)
        def mx(qt):
            t = vTmp + 2 * (qt % 4); r = raw(qt)
            return [I(f"v_max3_f32 v{t}, v{r}, v{r+1}, v{r+2}"), I(f"v_max_f32 v{t}, v{t}, v{r+3}"), I(f"v_mov_b32 v{t+1}, v{t}"),
                    I(f"v_permlane32_swap_b32 v{t}, v{t+1}"), I(f"v_max_f32 v{t}, v{t}, v{t+1}"), I(f"v_mov_b32 v{t+1}, v{t}"),
                    I(f"v_permlane16_swap_b32 v{t}, v{t+1}")] + \
                   [I(f"v_min_f32 v{vC(qt)+e}, -v{t}, -v{t+1}") for e in range(4)]
        def sm0(qt):
            r = raw(qt)
            return [I(f"v_add_f32 v{r+e}, v{r+e}, v{vC(qt)}") for e in range(4)] + [s.ex(r + e) for e in range(4)] + \
                   [s.cvt(vP(0, qt), r), s.cvt(vP(0, qt) + 1, r + 2)]
        def sm1(qt):
            r = s.sbuf(gi, NQ + qt)
            return [s.ex(r + e) for e in range(4)] + [s.cvt(vP(0, qt) + 2, r), s.cvt(vP(0, qt) + 3, r + 2)]
        def weave(*ls):
            out = []
            for k in range(max(len(l) for l in ls)):
                out += [l[k] for l in ls if k < len(l)]
            return out
        def spread(mf, fl):
            out = []; n = len(fl); k = 0
            for j, m in enumerate(mf):
                out.append(m); e = (n * (j + 1)) // len(mf); out += fl[k:e]; k = e
            return out
        ch0 = lambda qt: [s.qk(raw(qt), 0, qt, st, "0") for st in range(4)]
        ch1 = lambda qt: [s.qk(s.sbuf(gi, NQ + qt), 1, qt, st, vr(vC(qt))) for st in range(4)]
        L += ch0(0) + ch0(1) + ch0(2)
        L += spread(sum((ch0(q) for q in range(3, NQ)), []), weave(mx(0), mx(1), mx(2)))
        L += spread(ch1(0) + ch1(1), weave(*[mx(q) for q in range(3, NQ)]) + sm0(0) + sm0(1))
        for q in range(2, NQ): L += spread(ch1(q), sm1(q - 2) + sm0(q))
        L += sm1(NQ - 2)
        return fix(L)
    def secC2(s, h):
        sc = SCHED[s.NQ]; gi = -1
        L = s.adv() + [I("s_waitcnt vmcnt(10) lgkmcnt(0)"), I("s_barrier")]
        L += [s.rd(n, gi, True) for b, n in sorted(sc["rd"].items()) if b > sc["bar"] and n[0] == "V"]
        for m0, ld in s.group(gi, s.dummy()): L += m0 + [ld]
        return fix(L)
    def secC3(s, h):
        gi = 32 * h - 1
        L = [s.kread(gi + 2, 0, st) for st in range(4)]
        L += [I(f"s_mov_b32 s{sCnt}, 8"), I("s_waitcnt lgkmcnt(0)")]
        return L
    def start(s):
        NQ = s.NQ; L = []
        L += [I(f"s_mov_b32 s{sQ+2}, {HEADQ + s.NP*1024}"), I(f"s_mov_b32 s{sO+2}, {HEADQ + s.NP*1024}"), I(f"s_mov_b32 s{sO0+2}, {s.NP*1024}"),
              I(f"s_add_u32 s{sTend}, s{sXw}, {s.NP*1024}"), I(f"s_mov_b32 s{sNq}, {NQ}")]
        for qt in range(NQ):
            L += [I(f"s_add_u32 m0, s{sXw}, {qt*4096}"), I(f"s_mov_b32 s{sT}, {qt*4096}")]
            L += [I(f"buffer_load_dwordx4 v{vSw(e)}, {srd(sQ)}, s{sT} offen offset:{e*1024} lds", ("pdma", f"X{qt}", "Q0")) for e in range(4)]
        for gi in (-4, -3, -2):
            L += s.adv()
            for m0, ld in s.group(gi, s.dummy()): L += m0 + [ld]
        L += [I(f"s_mov_b32 s{sT}, {HEADQ - 1024}"), I(f"s_sub_u32 s{sTm}, s{sXw}, 1024")]
        for qt in range(NQ): L += s.zeroO(qt) + [I(f"{MF} {ar(aL(qt))}, {ar(aZ)}, {ar(aZ)}, 0")]
        return fix(L)
    def start2(s):
        return [I("s_barrier")] + [s.kread(0, kt, st) for kt in range(2) for st in range(4)] + [I("s_waitcnt lgkmcnt(0)")]
    def path(s, common):
        x = s.sfx; two = s.c.omode != "burst"
        def lab(n): return I(f"{n}{x}:")
        A0, A1 = s.secA(0), s.secA(1)
        loops = {}
        for ph in (0, 1):
            loops[ph] = {gi: s.step(gi, ph if two else 0) for gi in range(32 * ph, 32 * ph + 31)}
            for gi in loops[ph]:
                ref = loops[ph if two else 0][(32 * ph if two else 0) + 3 + (gi + 1) % 4]
                assert [a.text for a in loops[ph][gi]] == [a.text for a in ref]
        T0, T1 = s.tail(31, loops[0][30]), s.tail(63, loops[1][62])
        if [a.text for a in T0] != [a.text for a in T1]:
            T0 = [I("s_waitcnt lgkmcnt(0)")] + s.tail(31, loops[0][30] + [I("s_waitcnt lgkmcnt(0)")])
            T1 = [I("s_waitcnt lgkmcnt(0)")] + s.tail(63, loops[1][62] + [I("s_waitcnt lgkmcnt(0)")])
        assert [a.text for a in T0] == [a.text for a in T1]
        B0, B1 = s.secB(0, T0), s.secB(1, T1)
        C0, C1 = s.secC(0), s.secC(1)
        assert [a.text for a in C0] == [a.text for a in C1]
        st, st2, c2, c30, c31, fin = s.start(), s.start2(), s.secC2(0), s.secC3(0), s.secC3(1), s.final()
        j = lambda t: [I(t)]
        cmp0 = I(f"s_cmp_eq_u32 s{sHead}, 0")
        nxt = [I(f"s_add_u32 s{sHead}, s{sHead}, 1")] + ([I(f"s_mov_b32 s{sT}, -1024")] if two else [I(f"s_mov_b32 s{sT}, s{sBig}")])
        code = [lab("PATH")] + st + j(f"s_branch SECA{x}")
        code += [lab("TAIL")] + s.stamp(3) + T0 + [cmp0] + j(f"s_cbranch_scc0 SECB{x}")
        code += [lab("SECA")] + A0 + [cmp0] + j(f"s_cbranch_scc0 START2{x}")
        code += [lab("SECB")] + s.stamp(5) + B0 + [cmp0] + j(f"s_cbranch_scc0 FINAL{x}") + nxt
        code += [lab("SECC")] + s.stamp(1) + C0 + [cmp0] + j(f"s_cbranch_scc1 SECC2{x}")
        code += [lab("SECC3")] + c30 + s.stamp(2)
        if two: code += [cmp0] + j(f"s_cbranch_scc0 ENTRY1{x}")
        code += j(f"s_branch ENTRY0{x}")
        code += [lab("START2")] + st2 + j(f"s_mov_b32 s{sHead}, 0") + j(f"s_branch SECC{x}")
        code += [lab("SECC2")] + c2 + j(f"s_branch SECC3{x}")
        code += [lab("FINAL")] + s.stamp(0) + fin + j("s_branch DONE")
        for ph in ((0, 1) if two else (0,)):
            code += [I(".p2align 6"), lab(f"LOOP{ph}")] + loops[ph][32 * ph + 3] + [lab(f"ENTRY{ph}")]
            for k in (4, 5, 6): code += loops[ph][32 * ph + k]
            code += j(f"s_cbranch_scc1 LOOP{ph}{x}") + j(f"s_branch TAIL{x}")
        br = [I("s_cmp_eq_u32 s0, 0"), I("s_branch X")]
        tr = common + st + br[1:] + A0 + br + st2 + br + C0 + br + c2 + br[1:] + c30 + br[1:]
        for gi in range(31): tr += loops[0][gi]
        tr += br + T0 + br + A1 + br + B0 + br + C1 + br + c31 + br[1:]
        for gi in range(32, 63): tr += loops[1][gi]
        tr += br + T1 + br + B1 + br + fin
        errs = check(tr, f"NQ{s.NQ}")
        if not (s.c.nodma or s.c.nobar or s.c.nolds or s.c.nosm): assert errs == 0
        return code

def common_start(cfg):
    g = Gen(cfg, 6)
    t = vTmp
    L = [I(x) for x in f"""
s_cmp_ge_u32 s2, 256
s_cbranch_scc1 EXIT
s_load_dwordx4 s[{sTmp}:{sTmp+3}], s[0:1], 0
s_load_dwordx4 s[48:51], s[0:1], 16
v_lshrrev_b32 v{t}, 6, v0
v_and_b32 v0, 63, v0
v_readfirstlane_b32 s{sW}, v{t}
v_lshlrev_b32 v{vLin}, 4, v0
s_lshl_b32 s3, s2, 19
s_mul_i32 s45, s2, {2*HEADQ}
s_mul_i32 s{sXw}, s{sW}, 24576
s_mul_i32 s{sMw}, s{sW}, {2*PIECE}
s_lshl_b32 s{sKo}, s{sW}, 11
s_add_u32 s45, s45, s{sXw}
s_sub_u32 s{sVo}, s{sKo}, 8192
s_mov_b32 s{sK+2}, 0x80000
s_mov_b32 s{sK+3}, 0x20000
s_mov_b32 s{sV+2}, 0x80000
s_mov_b32 s{sV+3}, 0x20000
s_mov_b32 s{sQ+3}, 0x20000
s_mov_b32 s{sO0+3}, 0x20000
s_mov_b32 s{sO+3}, 0x20000
s_mov_b32 s{sDum}, {DUMMY}
s_mov_b32 s{sBig}, 0x40000000
s_mov_b32 s{sMask}, 0xffff0000
s_mov_b32 s{sSc}, {SCALE:#x}
s_mov_b32 s{sSc+1}, {SCALE:#x}
s_mov_b32 s{sHead}, -1
s_mov_b32 s{sFlag}, 0
v_and_b32 v{t}, 15, v0
v_lshrrev_b32 v{t+1}, 4, v0
v_xor_b32 v{t+2}, v{t}, v{t+1}
v_lshlrev_b32 v{t+2}, 4, v{t+2}
v_lshl_add_u32 v{vSw(0)}, v{t+1}, 8, v{t+2}
s_waitcnt lgkmcnt(0)
s_add_u32 s{sK}, s{sTmp+2}, s3
s_addc_u32 s{sK+1}, s{sTmp+3}, 0
s_add_u32 s{sV}, s48, s3
s_addc_u32 s{sV+1}, s49, 0
s_add_u32 s{sQ}, s{sTmp}, s45
s_addc_u32 s{sQ+1}, s{sTmp+1}, 0
s_add_u32 s{sO}, s50, s45
s_addc_u32 s{sO+1}, s51, 0
s_mov_b32 s{sO0}, s{sO}
s_mov_b32 s{sO0+1}, s{sO+1}
""".strip().split("\n")]
    for e in range(2):
        m0, ld = g.dma("K", 0, e); L += m0 + [ld]
    L += g.stamp(0)
    if cfg.stamps: L += [I(f"s_memrealtime s[{sStamp+12}:{sStamp+13}]"), I("s_waitcnt lgkmcnt(0)")]
    L += [I(x) for x in f"""
v_xor_b32 v{vSw(1)}, 64, v{vSw(0)}
v_xor_b32 v{vSw(2)}, 0x80, v{vSw(0)}
v_xor_b32 v{vSw(3)}, 0xc0, v{vSw(0)}
v_lshl_add_u32 v{vQr}, v{t}, 8, v{t+2}
v_add_u32 v{vQr}, s{sXw}, v{vQr}
v_add_u32 v{vXa}, s{sXw}, v{vLin}
v_lshrrev_b32 v{t+3}, 5, v0
v_xor_b32 v{t+3}, v{t+3}, v{t}
v_lshlrev_b32 v{t+3}, 4, v{t+3}
v_lshl_add_u32 v{t+3}, v{t}, 8, v{t+3}
v_and_b32 v{t+4}, 1, v{t+1}
v_lshl_add_u32 v{t+3}, v{t+4}, 3, v{t+3}
v_add_u32 v{vOw}, s{sXw}, v{t+3}
v_and_b32 v{t+5}, 7, v0
v_mul_u32_u24 v{t+5}, {PIECE}, v{t+5}
v_bfe_u32 v{t+6}, v0, 3, 1
v_lshl_add_u32 v{t+5}, v{t+6}, 9, v{t+5}
v_lshl_add_u32 v{t+5}, v{t+1}, 4, v{t+5}
v_add_u32 v{vKa}, {KBASE}, v{t+5}
v_bfe_u32 v{t+5}, v0, 2, 3
v_mul_u32_u24 v{t+5}, {PIECE}, v{t+5}
v_lshrrev_b32 v{t+6}, 5, v0
v_lshl_add_u32 v{t+5}, v{t+6}, 9, v{t+5}
v_and_b32 v{t+6}, 3, v0
v_lshl_add_u32 v{t+5}, v{t+6}, 3, v{t+5}
v_add_u32 v{vVa}, {VBASE}, v{t+5}
v_mov_b32 v7, {LIMIT:#x}
v_mov_b32 v{t+7}, 0x3f803f80
v_cmp_eq_u32 vcc, 0, v{t+6}
v_cndmask_b32 v{t+7}, 0, v{t+7}, vcc
""".strip().split("\n")]
    for e in range(4): L += [I(f"v_accvgpr_write_b32 a{aONE+e}, v{t+7}"), I(f"v_accvgpr_write_b32 a{aZ+e}, 0")]
    L += [I(f"s_cmp_eq_u32 s{sW}, 3"), I("s_cbranch_scc1 PATH_5")]
    return fix(L)

def slow(cfg):
    g = Gen(cfg, 6)
    q, o, sb, p, c, t = 16, 32, 64, 72, 76, 80
    kf, vf, l = 96, 128, 160
    va, vb, vg, vo = 164, 165, 166, 167
    sH, sQt, sJ, sA, sB = 46, 47, 48, 49, 50
    def dmas(which):
        L = []
        for e in range(8):
            L += [I(f"s_add_u32 m0, s{sXw}, {(0 if which == 'K' else SLOT) + e*PIECE}"), I(f"s_add_u32 s{sB}, s{sA}, {e*1024}"),
                  I(f"buffer_load_dwordx4 v{vLin}, {srd(sK if which == 'K' else sV)}, s{sB} offen lds")]
        return L
    kr = [I(f"ds_read_b128 {vr(kf + 16*kt + 4*st)}, v{va} offset:{kt*256 + st*64}") for kt in range(2) for st in range(4)]
    def qk(ci): return [I(f"{MF} {vr(sb + 4*kt)}, {vr(kf + 16*kt + 4*st)}, {vr(q + 4*st)}, {ci if st == 0 else vr(sb + 4*kt)}") for kt in range(2) for st in range(4)]
    X = lambda txt: [I(x) for x in txt.strip().split("\n")]
    big = [I("s_nop 7"), I("s_nop 7")]
    L = X(f"""
DONE:
s_cmp_eq_u32 s{sFlag}, 0
s_cbranch_scc1 EXIT2
s_waitcnt vmcnt(0) lgkmcnt(0)
s_sub_u32 s{sA}, s{sXw}, {KBASE}
v_add_u32 v{va}, s{sA}, v{vKa}
s_sub_u32 s{sA}, s{sXw}, {VBASE - SLOT}
v_add_u32 v{vb}, s{sA}, v{vVa}
v_and_b32 v{t}, 15, v0
v_lshrrev_b32 v{t+1}, 4, v0
v_lshlrev_b32 v{t}, 8, v{t}
v_lshl_add_u32 v{vg}, v{t+1}, 4, v{t}
v_lshl_add_u32 v{vo}, v{t+1}, 3, v{t}
s_mov_b32 s{sH}, 0
SL_HEAD:
s_lshr_b32 s{sA}, s{sFlag}, s{sH}
s_and_b32 s{sA}, s{sA}, 1
s_cbranch_scc0 SL_NEXTH
s_mov_b32 s{sQt}, 0
SL_TILE:
s_mul_i32 s{sT}, s{sH}, {HEADQ}
s_lshl_b32 s{sA}, s{sQt}, 12
s_add_u32 s{sT}, s{sT}, s{sA}
""")
    L += [I(f"buffer_load_dwordx4 {vr(q + 4*st)}, v{vg}, {srd(sQ)}, s{sT} offen offset:{64*st}") for st in range(4)]
    for r in range(q, q + 16):
        L += X(f"v_lshlrev_b32 v{t}, 16, v{r}\nv_and_b32 v{t+1}, s{sMask}, v{r}\nv_pk_mul_f32 {vr(t,2)}, {vr(t,2)}, s[{sSc}:{sSc+1}]") + [g.cvt(r, t)]
    L += X(f"v_mov_b32 v{t}, 0xff800000\ns_lshl_b32 s{sA}, s{sH}, 18\ns_mov_b32 s{sJ}, 32\nSL_P1:")
    L += dmas("K") + [I("s_waitcnt vmcnt(0)")] + kr + qk("0")
    L += [I(f"v_max3_f32 v{t}, v{t}, v{sb+2*e}, v{sb+2*e+1}") for e in range(4)]
    L += X(f"s_add_u32 s{sA}, s{sA}, 8192\ns_sub_u32 s{sJ}, s{sJ}, 1\ns_cmp_lg_u32 s{sJ}, 0\ns_cbranch_scc1 SL_P1")
    L += X(f"""
v_mov_b32 v{t+1}, v{t}
v_permlane32_swap_b32 v{t}, v{t+1}
v_max_f32 v{t}, v{t}, v{t+1}
v_mov_b32 v{t+1}, v{t}
v_permlane16_swap_b32 v{t}, v{t+1}
""")
    L += [I(f"v_min_f32 v{c+e}, -v{t}, -v{t+1}") for e in range(4)]
    L += [I(f"v_mov_b32 v{r}, 0") for r in list(range(o, o + 32)) + list(range(l, l + 4))]
    L += X(f"s_lshl_b32 s{sA}, s{sH}, 18\ns_mov_b32 s{sJ}, 32\nSL_P2:")
    L += dmas("K") + dmas("V") + [I("s_waitcnt vmcnt(0)")] + kr + qk(vr(c))
    L += [I(f"ds_read_b64_tr_b16 {vr(vf + 4*dt + 2*h, 2)}, v{vb} offset:{h*256 + dt*32}") for dt in range(8) for h in range(2)]
    L += [g.ex(sb + e) for e in range(8)] + [g.cvt(p + e, sb + 2 * e) for e in range(4)]
    L += [I("s_waitcnt lgkmcnt(0)")]
    L += [I(f"{MF} {vr(o + 4*dt)}, {vr(vf + 4*dt)}, {vr(p)}, {vr(o + 4*dt)}") for dt in range(8)]
    L += [I(f"{MF} {vr(l)}, {ar(aONE)}, {vr(p)}, {vr(l)}")]
    L += X(f"s_add_u32 s{sA}, s{sA}, 8192\ns_sub_u32 s{sJ}, s{sJ}, 1\ns_cmp_lg_u32 s{sJ}, 0\ns_cbranch_scc1 SL_P2")
    L += [I(f"v_rcp_f32 v{l}, v{l}")]
    L += [I(f"v_mul_f32 v{r}, v{r}, v{l}") for r in range(o, o + 32)]
    L += [g.cvt(kf + e, o + 2 * e) for e in range(16)]
    L += [I(f"buffer_store_dwordx2 {vr(kf + 2*dt, 2)}, v{vo}, {srd(sO)}, s{sT} offen offset:{32*dt}") for dt in range(8)]
    L += X(f"""
s_waitcnt vmcnt(0)
s_add_u32 s{sQt}, s{sQt}, 1
s_cmp_lt_u32 s{sQt}, s{sNq}
s_cbranch_scc1 SL_TILE
SL_NEXTH:
s_add_u32 s{sH}, s{sH}, 1
s_cmp_lt_u32 s{sH}, 2
s_cbranch_scc1 SL_HEAD
EXIT2:
""")
    L = fix(L)
    assert check(L + L, "slow") == 0
    if cfg.stamps:
        L += X(f"""
s_waitcnt vmcnt(0) lgkmcnt(0)
s_memtime s[{sStamp+8}:{sStamp+9}]
s_memrealtime s[{sStamp+14}:{sStamp+15}]
s_load_dwordx2 s[92:93], s[0:1], 40
s_mov_b32 s94, 0x100000
s_mov_b32 s95, 0x20000
s_lshl_b32 s3, s2, 2
s_add_u32 s3, s3, s{sW}
s_lshl_b32 s3, s3, 7
s_waitcnt lgkmcnt(0)
""")
        for e in range(32): L.append(I(f"v_mov_b32 v{16+e}, s{sStamp+e}"))
        L += X("v_mov_b32 v1, 0\nv_cmp_eq_u32 vcc, 0, v0\ns_and_saveexec_b64 s[96:97], vcc")
        L += [I(f"buffer_store_dwordx4 {vr(16+4*e)}, v1, s[92:95], s3 offen offset:{16*e}") for e in range(8)]
    L += X("EXIT:\ns_endpgm")
    return L

HEAD = """; Fused multi-head attention forward: out = softmax(q k^T / sqrt(128)) v, two heads per workgroup.
; @launch grid=(256,1,1) block=(256,1,1) lds={lds}
.amdgcn_target "amdgcn-amd-amdhsa--gfx950"
.text
.globl standalone__mha_softmax__near_ridge_kernel
.p2align 8
.type standalone__mha_softmax__near_ridge_kernel,@function
standalone__mha_softmax__near_ridge_kernel:
"""
TAIL = """
.section .rodata,"a"
.p2align 6
.amdhsa_kernel standalone__mha_softmax__near_ridge_kernel
  .amdhsa_next_free_vgpr 512
  .amdhsa_next_free_sgpr 102
  .amdhsa_accum_offset 256
  .amdhsa_group_segment_fixed_size 0
  .amdhsa_kernarg_size 48
  .amdhsa_user_sgpr_count 2
  .amdhsa_user_sgpr_kernarg_segment_ptr 1
  .amdhsa_system_sgpr_workgroup_id_x 1
.end_amdhsa_kernel
"""
def build(name, **kw):
    cfg = Cfg(**kw)
    cs = common_start(cfg)
    code = cs + Gen(cfg, 6).path(cs) + Gen(cfg, 5).path(cs) + slow(cfg)
    open(name, "w").write(HEAD.format(lds=LDS) + "\n".join(("" if x.kind == "label" else "  ") + x.text for x in code) + TAIL)

if __name__ == "__main__":
    build("v1_tr.s", omode="trickle")
    build("v1_bu.s", omode="burst")
    build("v1_tr_st.s", omode="trickle", stamps=True)
    build("v1_bu_st.s", omode="burst", stamps=True)
```

```python
import sys, math, struct
from asmlib import *

class Cfg:
    omode = "trickle"
    stamps = False
    nodma = False; nobar = False; nolds = False; nosm = False
    nt = ""
    dbgwg = None
    def __init__(s, **kw):
        for k, v in kw.items(): setattr(s, k, v)

PIECE = 1056; SLOT = 8 * PIECE; HEADQ = 94208
KBASE = HEADQ; VBASE = KBASE + 4 * SLOT; DUMMY = VBASE + 4 * SLOT; LDS = DUMMY + 1024
MF = "v_mfma_f32_16x16x32_bf16"; MF32 = "v_mfma_f32_32x32x16_bf16"
def rr(f, x, n): return f"{f}[{x}:{x+n-1}]" if n > 1 else f"{f}{x}"
def vr(x, n=4): return rr("v", x, n)
def ar(x, n=4): return rr("a", x, n)
aO = lambda qt, dt: (qt * 8 + dt) * 4
aL = lambda qt: 192 + 4 * qt
aK = lambda kt, s: 216 + 16 * kt + 4 * s
aONE = 248; aZ = 252
vLin, vKa, vVa, vXa, vQr, vOw = 1, 2, 3, 4, 5, 6
vSw = lambda n: 8 + n
vT = 12
vQ = lambda qt, s: 16 + 16 * qt + 4 * s
vP = lambda b, qt: 112 + 24 * b + 4 * qt
vC = lambda qt: 160 + 4 * qt
vS = lambda b: 184 + 4 * b
vV = lambda dt: 200 + 4 * (dt % 4)
vTmp = 216
sK, sV, sQ, sO0, sO = 4, 8, 12, 16, 20
sKo, sVo, sT, sTm, sCnt, sHead, sFlag, sW, sMw, sXw = 24, 25, 26, 27, 28, 29, 30, 31, 32, 33
sSc, sMask, sTend, sDum, sBig, sTmp, sNq = 34, 36, 37, 38, 39, 40, 44
sStamp = 56
def srd(b): return f"s[{b}:{b+3}]"
SCALE = struct.unpack("<I", struct.pack("<f", math.log2(math.e) / math.sqrt(128.0)))[0]
LIMIT = 0x4b800000

SCHED = {
 6: dict(bar=60, ones=[63, 67, 71, 75, 79, 83],
         rd={1: "V2b", 5: "V3a", 9: "V3b", 13: "KB0", 17: "KB1", 21: "KB2", 25: "KB3", 29: "V4a", 33: "V4b", 37: "V5a", 39: "V5b",
             43: "V6a", 45: "V6b", 49: "V7a", 51: "V7b",
             61: "KA0", 65: "KA1", 69: "KA2", 73: "KA3", 77: "V0a", 81: "V0b", 85: "V1a", 89: "V1b", 93: "V2a"}),
 5: dict(bar=52, ones=[55, 59, 63, 67, 71],
         rd={1: "V2b", 5: "V3a", 7: "V3b", 9: "KB0", 11: "KB1", 13: "KB2", 17: "KB3", 19: "V4a", 21: "V4b", 25: "V5a", 27: "V5b",
             33: "V6a", 35: "V6b", 41: "V7a", 43: "V7b",
             53: "KA0", 57: "KA1", 59: "KA2", 61: "KA3", 63: "V0a", 65: "V0b", 69: "V1a", 73: "V1b", 75: "V2a"}),
}

class Gen:
    def __init__(s, cfg, NQ):
        s.c = cfg; s.NQ = NQ; s.NP = 4 * NQ; s.sfx = f"_{NQ}"; s.nst = 0
    def kread(s, j, kt, st):
        return I(f"ds_read_b128 {ar(aK(kt, st))}, v{vKa} offset:{(j % 4) * SLOT + kt * 256 + st * 64}", ("rd", f"K{j%4}", j))
    def vread(s, j, dt, h):
        return I(f"ds_read_b64_tr_b16 {vr(vV(dt) + 2 * h, 2)}, v{vVa} offset:{(j % 4) * SLOT + h * 256 + dt * 32}", ("rd", f"V{j%4}", j))
    def rd(s, name, gi, post):
        if name[0] == "K": return s.kread(gi + (2 if name[1] == "A" else 1), 0 if name[1] == "A" else 1, int(name[2]))
        return s.vread(gi + (1 if post else 0), int(name[1]), 0 if name[2] == "a" else 1)
    def dma(s, which, j, e):
        base = (KBASE if which == "K" else VBASE) + (j % 4) * SLOT + 32 * e
        so = sKo if which == "K" else sVo
        return ([I(f"s_add_u32 m0, s{sMw}, {base}")],
                I(f"buffer_load_dwordx4 v{vLin}, {srd(sK if which == 'K' else sV)}, s{so} offen offset:{1024*e}{s.c.nt} lds", ("dma", f"{which}{j%4}", j)))
    def dummy(s):
        return ([I(f"s_mov_b32 m0, s{sDum}")], I(f"buffer_load_dwordx4 v{vLin}, {srd(sQ)}, s{sBig} offen lds"))
    def adv(s): return [I(f"s_add_u32 s{sKo}, s{sKo}, 8192"), I(f"s_add_u32 s{sVo}, s{sVo}, 8192")]
    def sbuf(s, gi, c): return vS((((gi + 1) % 4) * 2 * s.NQ + c) % 4)
    def qk(s, d, kt, qt, st, cinit):
        return I(f"{MF} {vr(d)}, {ar(aK(kt, st))}, {vr(vQ(qt, st))}, {cinit if st == 0 else vr(d)}")
    def pv(s, i, dt, qt): return I(f"{MF} {ar(aO(qt, dt))}, {vr(vV(dt))}, {vr(vP(i % 2, qt))}, {ar(aO(qt, dt))}")
    def ones(s, i, qt): return I(f"{MF} {ar(aL(qt))}, {ar(aONE)}, {vr(vP(i % 2, qt))}, {ar(aL(qt))}")
    def ex(s, r): return I(f"v_exp_f32 v{r}, v{r}")
    def cvt(s, d, a): return I(f"v_cvt_pk_bf16_f32 v{d}, v{a}, v{a+1}")
    def stamp(s, k):
        if not s.c.stamps: return []
        return [I(f"s_waitcnt lgkmcnt(0)"), I(f"s_mov_b64 s[{sStamp+2*k+16}:{sStamp+2*k+17}], s[{sStamp+2*k}:{sStamp+2*k+1}]"),
                I(f"s_memtime s[{sStamp+2*k}:{sStamp+2*k+1}]"), I("s_waitcnt lgkmcnt(0)")]
    def group(s, gi, T):
        g = [s.dma("K", gi + 5, 0), s.dma("K", gi + 5, 1), s.dma("V", gi + 4, 0), s.dma("V", gi + 4, 1), T]
        return g
    def step_raw(s, gi, phase):
        NQ = s.NQ; sc = SCHED[NQ]; nb = 16 * NQ; i = gi % 32; p = (gi + 1) % 4
        pre = [[] for _ in range(nb)]; mid = [[] for _ in range(nb)]; post = [[] for _ in range(nb)]
        mf = []
        for c in range(2 * NQ):
            kt, qt = divmod(c, NQ)
            for st in range(4): mf.append(s.qk(s.sbuf(gi, c), kt, qt, st, vr(vC(qt))))
            for m in range(4 * c, 4 * c + 4): mf.append(s.pv(gi, *divmod(m, NQ)))
            if c == 0: sb = s.sbuf(gi - 1, 2 * NQ - 1); d = vP(gi % 2, NQ - 1) + 2
            else: sb = s.sbuf(gi, c - 1); d = vP((gi + 1) % 2, (c - 1) % NQ) + 2 * ((c - 1) // NQ)
            if not s.c.nosm:
                for e in range(4): mid[8 * c + 2 * e].append(s.ex(sb + e))
                mid[8 * c + 3].append(s.cvt(d, sb)); mid[8 * c + 7].append(s.cvt(d + 1, sb + 2))
        if not s.c.nolds:
            for b, nm in sc["rd"].items(): pre[b].append(s.rd(nm, gi, b > sc["bar"]))
        if phase == 0:
            T = ([I(f"s_cmp_lt_u32 s{sTm}, s{sTend}"), I(f"s_cselect_b32 m0, s{sTm}, s{sDum}")],
                 I(f"buffer_load_dwordx4 v{vSw(i % 4)}, {srd(sQ)}, s{sT} offen lds", ("pdma", f"X{i//4}", "Q1") if (i < s.NP and gi < 32) else None))
            pre[2] += [I(f"s_add_u32 s{sT}, s{sT}, 1024"), I(f"s_add_u32 s{sTm}, s{sTm}, 1024")]
        else:
            pre[3].append(I(f"ds_read_b128 {vr(vT)}, v{vXa} offset:{(i % 4) * 1024}", ("prd", f"X{i//4}", "O0") if i < s.NP else None))
            T = ([], I(f"buffer_store_dwordx4 {vr(vT)}, v{vSw(i % 4)}, {srd(sO0)}, s{sT} offen"))
            pre[2] += [I(f"s_add_u32 s{sT}, s{sT}, 1024")]
            if i % 4 == 3: mid[5].append(I(f"v_add_u32 v{vXa}, 0x1000, v{vXa}"))
        if not s.c.nobar:
            pre[sc["bar"]] += [I("s_waitcnt vmcnt(10) lgkmcnt(0)"), I("s_barrier")]
        g = s.group(gi, T)
        for k, b in enumerate(sc["ones"]):
            post[b].append(s.ones(gi, k))
            if k < len(g) and not s.c.nodma:
                pre[b - 1] += g[k][0]; post[b].append(g[k][1])
        pre[4] += s.adv()
        if p == 3:
            pre[nb - 4].append(I(f"s_sub_u32 s{sCnt}, s{sCnt}, 1"))
            pre[nb - 2].append(I(f"s_cmp_lg_u32 s{sCnt}, 0"))
        out = []
        for b in range(nb):
            mf[b].even = (b % 2 == 0)
            out += [mf[b]] + pre[b] + mid[b] + post[b]
        return out
    def step(s, gi, phase):
        a, b, c = s.step_raw(gi - 1, phase), s.step_raw(gi, phase), s.step_raw(gi + 1, phase)
        seq = a + b + c; ins = {}
        lg = []
        for k, x in enumerate(seq):
            touch = x.rd | x.wr
            idx = [j for j in lg if seq[j].wr & touch]
            if idx:
                j = idx[-1]; q = k - 1
                while not (seq[q].kind == "mfma" and getattr(seq[q], "even", False)): q -= 1
                assert q > j, (seq[j], x)
                n = sum(1 for t in lg if j < t <= q)
                ins[q] = n; lg = [t for t in lg if t > j]
            if x.kind == "ds": lg.append(k)
            if x.kind == "wait" and x.lg is not None: lg = lg[len(lg) - x.lg:] if x.lg else []
        out = []
        for k in range(len(a), len(a) + len(b)):
            out.append(seq[k])
            if k in ins: out.append(I(f"s_waitcnt lgkmcnt({ins[k]})"))
        return out
    def tail(s, gi, prev):
        NQ = s.NQ; sc = SCHED[NQ]
        mf = [s.ones(gi, k) for k in range(NQ - 1)] + [s.pv(gi, *divmod(m, NQ)) for m in range(8 * NQ)] + [s.ones(gi, NQ - 1)]
        o = NQ - 1
        fl = [[] for _ in mf]
        sb = s.sbuf(gi - 1, 2 * NQ - 1); d = vP(gi % 2, NQ - 1) + 2
        for e in range(4): fl[e].append(s.ex(sb + e))
        fl[4].append(s.cvt(d, sb)); fl[4].append(s.cvt(d + 1, sb + 2))
        names = [sc["rd"][b] for b in sorted(sc["rd"])]
        pre = [n for b, n in sorted(sc["rd"].items()) if b < sc["bar"]]
        post = [n for b, n in sorted(sc["rd"].items()) if b > sc["bar"] and n[0] == "V"]
        k = 5
        for n in pre:
            if n[0] == "V" and int(n[1]) >= 4: k = max(k, o + (int(n[1]) - 3) * NQ - 1)
            fl[k].insert(0, s.rd(n, gi, False)); k += 1
        k += 7
        fl[k] += s.adv() + [I("s_waitcnt vmcnt(10) lgkmcnt(0)"), I("s_barrier")]
        k += 1
        kk = k
        for m0, ld in s.group(gi, s.dummy()):
            fl[kk] += m0; fl[kk + 1].append(ld); kk += 2
        for n in post:
            k = max(k, o + (int(n[1]) + 5) * NQ - 1)
            while fl[k] and fl[k][-1].kind in ("vmem", "ds") and k < len(mf) - 1: k += 1
            fl[k].insert(0, s.rd(n, gi, True)); k = min(k + 1, len(mf) - 1)
        seq = []
        for m, f in zip(mf, fl): seq += [m] + f
        lg = []
        for x in prev:
            if x.kind == "ds": lg.append(x)
            if x.kind == "wait" and x.lg is not None: lg = lg[len(lg) - x.lg:] if x.lg else []
        return fix(seq, prev[-16:], lg)
    def secA(s, h):
        NQ = s.NQ; L = []
        for st in range(4): L.append(I(f"v_xor_b32 v{vTmp+st}, {64*st}, v{vQr}"))
        def reads(qt):
            return [I(f"s_waitcnt vmcnt({15 + 4*(NQ-1-qt)})")] + \
                   [I(f"ds_read_b128 {vr(vQ(qt, st))}, v{vTmp+st} offset:{qt*4096}", ("prd", f"X{qt}", f"Q{h}")) for st in range(4)]
        L += reads(0)
        t = vTmp + 4
        for qt in range(NQ):
            if qt + 1 < NQ: L += reads(qt + 1)
            for st in range(4):
                r = vQ(qt, st)
                for e in range(4):
                    L.append(I(f"v_lshlrev_b32 v{t+2*e}, 16, v{r+e}")); L.append(I(f"v_and_b32 v{t+2*e+1}, s{sMask}, v{r+e}"))
                for e in range(4): L.append(I(f"v_pk_mul_f32 {vr(t+2*e,2)}, {vr(t+2*e,2)}, s[{sSc}:{sSc+1}]"))
                for e in range(4): L.append(s.cvt(r + e, t + 2 * e))
        return fix(L)
    def zeroO(s, qt):
        return [I(f"{MF32} {ar(aO(qt, 4*e), 16)}, {ar(aZ)}, {ar(aZ)}, 0") for e in range(2)]
    def ostore(s, qt, h, r):
        L = [I(f"ds_read_b128 {vr(r + 4*e)}, v{vXa} offset:{qt*4096 + e*1024}", ("prd", f"X{qt}", f"O{h}")) for e in range(4)]
        L2 = [I(f"s_add_u32 s{sT}, s{sT}, 4096")] + \
             [I(f"buffer_store_dwordx4 {vr(r + 4*e)}, v{vSw(e)}, {srd(sO)}, s{sT} offen offset:{e*1024}") for e in range(4)]
        return L, L2
    def secB(s, h, prev):
        NQ = s.NQ; L = []; burst = s.c.omode == "burst"
        a = vP(0, 0)
        rl = a + 8
        for dt in range(8): L.append(I(f"v_xor_b32 v{a+dt}, {32*dt}, v{vOw}"))
        for qt in range(NQ): L.append(I(f"v_accvgpr_read_b32 v{rl+2*qt}, a{aL(qt)}"))
        L.append(I(f"s_mov_b64 s[{sTmp}:{sTmp+1}], 0"))
        for qt in range(NQ):
            L.append(I(f"v_cmp_nle_f32 vcc, v{rl+2*qt}, v{7}"))
            L.append(I(f"v_rcp_f32 v{rl+2*qt}, v{rl+2*qt}"))
            L.append(I(f"s_or_b64 s[{sTmp}:{sTmp+1}], s[{sTmp}:{sTmp+1}], vcc"))
            L.append(I(f"v_accvgpr_write_b32 a{aL(qt)}, 0"))
        L += [I(f"s_cmp_lg_u64 s[{sTmp}:{sTmp+1}], 0"), I(f"s_cselect_b32 s{sTmp}, 1, 0"), I(f"s_lshl_b32 s{sTmp}, s{sTmp}, s{sHead}"),
              I(f"s_or_b32 s{sFlag}, s{sFlag}, s{sTmp}")]
        if burst:
            L += [I(f"s_mul_i32 s{sT}, s{sHead}, {HEADQ}"), I(f"s_sub_u32 s{sT}, s{sT}, 4096")]
        pend = None
        for qt in range(NQ):
            for d2 in range(4):
                t = vTmp + 12 * (d2 % 2)
                for e in range(8): L.append(I(f"v_accvgpr_read_b32 v{t+e}, a{aO(qt, 2*d2)+e}"))
                for e in range(4): L.append(I(f"v_pk_mul_f32 {vr(t+2*e,2)}, {vr(t+2*e,2)}, {vr(rl+2*qt,2)} op_sel_hi:[1,0]"))
                for e in range(4): L.append(s.cvt(t + 8 + e, t + 2 * e))
                for e in range(2): L.append(I(f"ds_write_b64 v{a+2*d2+e}, {vr(t+8+2*e,2)} offset:{qt*4096}", ("pwr", f"X{qt}", f"O{h}")))
                if d2 == 1 and pend: L += pend; pend = None
            L += s.zeroO(qt)
            if burst:
                r1, pend = s.ostore(qt, h, vTmp + 24)
                L += r1
        if pend: L += pend
        return fix(L, prev[-16:])
    def final(s):
        L = []
        if s.c.omode != "burst":
            L += [I(f"s_mov_b32 s{sT}, {HEADQ - 4096}"), I(f"v_lshlrev_b32 v{vXa}, 0, v{vLin}"), I(f"v_add_u32 v{vXa}, s{sXw}, v{vXa}")]
            st = []
            for qt in range(s.NQ):
                r1, r2 = s.ostore(qt, 1, vQ(qt, 0))
                L += r1
                if qt >= 2: L += st[qt - 2]
                st.append(r2)
            L += st[-2] + st[-1]
        return fix(L)
    def secC(s, h):
        NQ = s.NQ; gi = 32 * h - 1; L = []
        raw = lambda qt: vP(1, qt)
        def mx(qt):
            t = vTmp + 2 * (qt % 4); r = raw(qt)
            return [I(f"v_max3_f32 v{t}, v{r}, v{r+1}, v{r+2}"), I(f"v_max_f32 v{t}, v{t}, v{r+3}"), I(f"v_mov_b32 v{t+1}, v{t}"),
                    I(f"v_permlane32_swap_b32 v{t}, v{t+1}"), I(f"v_max_f32 v{t}, v{t}, v{t+1}"), I(f"v_mov_b32 v{t+1}, v{t}"),
                    I(f"v_permlane16_swap_b32 v{t}, v{t+1}")] + \
                   [I(f"v_min_f32 v{vC(qt)+e}, -v{t}, -v{t+1}") for e in range(4)]
        def sm0(qt):
            r = raw(qt)
            return [I(f"v_add_f32 v{r+e}, v{r+e}, v{vC(qt)}") for e in range(4)] + [s.ex(r + e) for e in range(4)] + \
                   [s.cvt(vP(0, qt), r), s.cvt(vP(0, qt) + 1, r + 2)]
        def sm1(qt):
            r = s.sbuf(gi, NQ + qt)
            return [s.ex(r + e) for e in range(4)] + [s.cvt(vP(0, qt) + 2, r), s.cvt(vP(0, qt) + 3, r + 2)]
        def weave(*ls):
            out = []
            for k in range(max(len(l) for l in ls)):
                out += [l[k] for l in ls if k < len(l)]
            return out
        def spread(mf, fl):
            out = []; n = len(fl); k = 0
            for j, m in enumerate(mf):
                out.append(m); e = (n * (j + 1)) // len(mf); out += fl[k:e]; k = e
            return out
        ch0 = lambda qt: [s.qk(raw(qt), 0, qt, st, "0") for st in range(4)]
        ch1 = lambda qt: [s.qk(s.sbuf(gi, NQ + qt), 1, qt, st, vr(vC(qt))) for st in range(4)]
        L += ch0(0) + ch0(1) + ch0(2)
        L += spread(sum((ch0(q) for q in range(3, NQ)), []), weave(mx(0), mx(1), mx(2)))
        L += spread(ch1(0) + ch1(1), weave(*[mx(q) for q in range(3, NQ)]) + sm0(0) + sm0(1))
        for q in range(2, NQ): L += spread(ch1(q), sm1(q - 2) + sm0(q))
        L += sm1(NQ - 2)
        return fix(L)
    def secC2(s, h):
        sc = SCHED[s.NQ]; gi = -1
        L = s.adv() + [I("s_waitcnt vmcnt(10) lgkmcnt(0)"), I("s_barrier")]
        L += [s.rd(n, gi, True) for b, n in sorted(sc["rd"].items()) if b > sc["bar"] and n[0] == "V"]
        for m0, ld in s.group(gi, s.dummy()): L += m0 + [ld]
        return fix(L)
    def secC3(s, h):
        gi = 32 * h - 1
        L = [s.kread(gi + 2, 0, st) for st in range(4)]
        L += [I(f"s_mov_b32 s{sCnt}, 8"), I("s_waitcnt lgkmcnt(0)")]
        return L
    def start(s):
        NQ = s.NQ; L = []
        L += [I(f"s_mov_b32 s{sQ+2}, {HEADQ + s.NP*1024}"), I(f"s_mov_b32 s{sO+2}, {HEADQ + s.NP*1024}"), I(f"s_mov_b32 s{sO0+2}, {s.NP*1024}"),
              I(f"s_add_u32 s{sTend}, s{sXw}, {s.NP*1024}"), I(f"s_mov_b32 s{sNq}, {NQ}")]
        for qt in range(NQ):
            L += [I(f"s_add_u32 m0, s{sXw}, {qt*4096}"), I(f"s_mov_b32 s{sT}, {qt*4096}")]
            L += [I(f"buffer_load_dwordx4 v{vSw(e)}, {srd(sQ)}, s{sT} offen offset:{e*1024} lds", ("pdma", f"X{qt}", "Q0")) for e in range(4)]
        for gi in (-4, -3, -2):
            L += s.adv()
            for m0, ld in s.group(gi, s.dummy()): L += m0 + [ld]
        L += [I(f"s_mov_b32 s{sT}, {HEADQ - 1024}"), I(f"s_sub_u32 s{sTm}, s{sXw}, 1024")]
        for qt in range(NQ): L += s.zeroO(qt) + [I(f"{MF} {ar(aL(qt))}, {ar(aZ)}, {ar(aZ)}, 0")]
        return fix(L)
    def start2(s):
        return [I("s_barrier")] + [s.kread(0, kt, st) for kt in range(2) for st in range(4)] + [I("s_waitcnt lgkmcnt(0)")]
    def path(s, common):
        x = s.sfx; two = s.c.omode != "burst"
        def lab(n): return I(f"{n}{x}:")
        A0, A1 = s.secA(0), s.secA(1)
        loops = {}
        for ph in (0, 1):
            loops[ph] = {gi: s.step(gi, ph if two else 0) for gi in range(32 * ph, 32 * ph + 31)}
            for gi in loops[ph]:
                ref = loops[ph if two else 0][(32 * ph if two else 0) + 3 + (gi + 1) % 4]
                assert [a.text for a in loops[ph][gi]] == [a.text for a in ref]
        T0, T1 = s.tail(31, loops[0][30]), s.tail(63, loops[1][62])
        if [a.text for a in T0] != [a.text for a in T1]:
            T0 = [I("s_waitcnt lgkmcnt(0)")] + s.tail(31, loops[0][30] + [I("s_waitcnt lgkmcnt(0)")])
            T1 = [I("s_waitcnt lgkmcnt(0)")] + s.tail(63, loops[1][62] + [I("s_waitcnt lgkmcnt(0)")])
        assert [a.text for a in T0] == [a.text for a in T1]
        B0, B1 = s.secB(0, T0), s.secB(1, T1)
        C0, C1 = s.secC(0), s.secC(1)
        assert [a.text for a in C0] == [a.text for a in C1]
        st, st2, c2, c30, c31, fin = s.start(), s.start2(), s.secC2(0), s.secC3(0), s.secC3(1), s.final()
        j = lambda t: [I(t)]
        cmp0 = I(f"s_cmp_eq_u32 s{sHead}, 0")
        nxt = [I(f"s_add_u32 s{sHead}, s{sHead}, 1")] + ([I(f"s_mov_b32 s{sT}, -1024")] if two else [I(f"s_mov_b32 s{sT}, s{sBig}")])
        code = [lab("PATH")] + st + j(f"s_branch SECA{x}")
        code += [lab("TAIL")] + s.stamp(3) + T0 + [cmp0] + j(f"s_cbranch_scc0 SECB{x}")
        code += [lab("SECA")] + A0 + [cmp0] + j(f"s_cbranch_scc0 START2{x}")
        code += [lab("SECB")] + s.stamp(5) + B0 + [cmp0] + j(f"s_cbranch_scc0 FINAL{x}") + nxt
        code += [lab("SECC")] + s.stamp(1) + C0 + [cmp0] + j(f"s_cbranch_scc1 SECC2{x}")
        code += [lab("SECC3")] + c30 + s.stamp(2)
        if two: code += [cmp0] + j(f"s_cbranch_scc0 ENTRY1{x}")
        code += j(f"s_branch ENTRY0{x}")
        code += [lab("START2")] + st2 + j(f"s_mov_b32 s{sHead}, 0") + j(f"s_branch SECC{x}")
        code += [lab("SECC2")] + c2 + j(f"s_branch SECC3{x}")
        code += [lab("FINAL")] + s.stamp(0) + fin + j("s_branch DONE")
        for ph in ((0, 1) if two else (0,)):
            code += [I(".p2align 6"), lab(f"LOOP{ph}")] + loops[ph][32 * ph + 3] + [lab(f"ENTRY{ph}")]
            for k in (4, 5, 6): code += loops[ph][32 * ph + k]
            code += j(f"s_cbranch_scc1 LOOP{ph}{x}") + j(f"s_branch TAIL{x}")
        br = [I("s_cmp_eq_u32 s0, 0"), I("s_branch X")]
        tr = common + st + br[1:] + A0 + br + st2 + br + C0 + br + c2 + br[1:] + c30 + br[1:]
        for gi in range(31): tr += loops[0][gi]
        tr += br + T0 + br + A1 + br + B0 + br + C1 + br + c31 + br[1:]
        for gi in range(32, 63): tr += loops[1][gi]
        tr += br + T1 + br + B1 + br + fin
        errs = check(tr, f"NQ{s.NQ}")
        if not (s.c.nodma or s.c.nobar or s.c.nolds or s.c.nosm): assert errs == 0
        return code

def common_start(cfg):
    g = Gen(cfg, 6)
    t = vTmp
    L = [I(x) for x in f"""
s_cmp_ge_u32 s2, 256
s_cbranch_scc1 EXIT
s_load_dwordx4 s[{sTmp}:{sTmp+3}], s[0:1], 0
s_load_dwordx4 s[48:51], s[0:1], 16
v_lshrrev_b32 v{t}, 6, v0
v_and_b32 v0, 63, v0
v_readfirstlane_b32 s{sW}, v{t}
v_lshlrev_b32 v{vLin}, 4, v0
s_lshl_b32 s3, s2, 19
s_mul_i32 s45, s2, {2*HEADQ}
s_mul_i32 s{sXw}, s{sW}, 24576
s_mul_i32 s{sMw}, s{sW}, {2*PIECE}
s_lshl_b32 s{sKo}, s{sW}, 11
s_add_u32 s45, s45, s{sXw}
s_sub_u32 s{sVo}, s{sKo}, 8192
s_mov_b32 s{sK+2}, 0x80000
s_mov_b32 s{sK+3}, 0x20000
s_mov_b32 s{sV+2}, 0x80000
s_mov_b32 s{sV+3}, 0x20000
s_mov_b32 s{sQ+3}, 0x20000
s_mov_b32 s{sO0+3}, 0x20000
s_mov_b32 s{sO+3}, 0x20000
s_mov_b32 s{sDum}, {DUMMY}
s_mov_b32 s{sBig}, 0x40000000
s_mov_b32 s{sMask}, 0xffff0000
s_mov_b32 s{sSc}, {SCALE:#x}
s_mov_b32 s{sSc+1}, {SCALE:#x}
s_mov_b32 s{sHead}, -1
s_mov_b32 s{sFlag}, 0
v_and_b32 v{t}, 15, v0
v_lshrrev_b32 v{t+1}, 4, v0
v_xor_b32 v{t+2}, v{t}, v{t+1}
v_lshlrev_b32 v{t+2}, 4, v{t+2}
v_lshl_add_u32 v{vSw(0)}, v{t+1}, 8, v{t+2}
s_waitcnt lgkmcnt(0)
s_add_u32 s{sK}, s{sTmp+2}, s3
s_addc_u32 s{sK+1}, s{sTmp+3}, 0
s_add_u32 s{sV}, s48, s3
s_addc_u32 s{sV+1}, s49, 0
s_add_u32 s{sQ}, s{sTmp}, s45
s_addc_u32 s{sQ+1}, s{sTmp+1}, 0
s_add_u32 s{sO}, s50, s45
s_addc_u32 s{sO+1}, s51, 0
s_mov_b32 s{sO0}, s{sO}
s_mov_b32 s{sO0+1}, s{sO+1}
""".strip().split("\n")]
    for e in range(2):
        m0, ld = g.dma("K", 0, e); L += m0 + [ld]
    L += g.stamp(0)
    if cfg.stamps: L += [I(f"s_memrealtime s[{sStamp+12}:{sStamp+13}]"), I("s_waitcnt lgkmcnt(0)")]
    L += [I(x) for x in f"""
v_xor_b32 v{vSw(1)}, 64, v{vSw(0)}
v_xor_b32 v{vSw(2)}, 0x80, v{vSw(0)}
v_xor_b32 v{vSw(3)}, 0xc0, v{vSw(0)}
v_lshl_add_u32 v{vQr}, v{t}, 8, v{t+2}
v_add_u32 v{vQr}, s{sXw}, v{vQr}
v_add_u32 v{vXa}, s{sXw}, v{vLin}
v_lshrrev_b32 v{t+3}, 5, v0
v_xor_b32 v{t+3}, v{t+3}, v{t}
v_lshlrev_b32 v{t+3}, 4, v{t+3}
v_lshl_add_u32 v{t+3}, v{t}, 8, v{t+3}
v_and_b32 v{t+4}, 1, v{t+1}
v_lshl_add_u32 v{t+3}, v{t+4}, 3, v{t+3}
v_add_u32 v{vOw}, s{sXw}, v{t+3}
v_and_b32 v{t+5}, 7, v0
v_mul_u32_u24 v{t+5}, {PIECE}, v{t+5}
v_bfe_u32 v{t+6}, v0, 3, 1
v_lshl_add_u32 v{t+5}, v{t+6}, 9, v{t+5}
v_lshl_add_u32 v{t+5}, v{t+1}, 4, v{t+5}
v_add_u32 v{vKa}, {KBASE}, v{t+5}
v_bfe_u32 v{t+5}, v0, 2, 3
v_mul_u32_u24 v{t+5}, {PIECE}, v{t+5}
v_lshrrev_b32 v{t+6}, 5, v0
v_lshl_add_u32 v{t+5}, v{t+6}, 9, v{t+5}
v_and_b32 v{t+6}, 3, v0
v_lshl_add_u32 v{t+5}, v{t+6}, 3, v{t+5}
v_add_u32 v{vVa}, {VBASE}, v{t+5}
v_mov_b32 v7, {LIMIT:#x}
v_mov_b32 v{t+7}, 0x3f803f80
v_cmp_eq_u32 vcc, 0, v{t+6}
v_cndmask_b32 v{t+7}, 0, v{t+7}, vcc
""".strip().split("\n")]
    for e in range(4): L += [I(f"v_accvgpr_write_b32 a{aONE+e}, v{t+7}"), I(f"v_accvgpr_write_b32 a{aZ+e}, 0")]
    L += [I(f"s_cmp_eq_u32 s{sW}, 3"), I("s_cbranch_scc1 PATH_5")]
    return fix(L)

def slow(cfg):
    g = Gen(cfg, 6)
    q, o, sb, p, c, t = 16, 32, 64, 72, 76, 80
    kf, vf, l = 96, 128, 160
    va, vb, vg, vo = 164, 165, 166, 167
    sH, sQt, sJ, sA, sB = 46, 47, 48, 49, 50
    def dmas(which):
        L = []
        for e in range(8):
            L += [I(f"s_add_u32 m0, s{sXw}, {(0 if which == 'K' else SLOT) + e*PIECE}"), I(f"s_add_u32 s{sB}, s{sA}, {e*1024}"),
                  I(f"buffer_load_dwordx4 v{vLin}, {srd(sK if which == 'K' else sV)}, s{sB} offen lds")]
        return L
    kr = [I(f"ds_read_b128 {vr(kf + 16*kt + 4*st)}, v{va} offset:{kt*256 + st*64}") for kt in range(2) for st in range(4)]
    def qk(ci): return [I(f"{MF} {vr(sb + 4*kt)}, {vr(kf + 16*kt + 4*st)}, {vr(q + 4*st)}, {ci if st == 0 else vr(sb + 4*kt)}") for kt in range(2) for st in range(4)]
    X = lambda txt: [I(x) for x in txt.strip().split("\n")]
    big = [I("s_nop 7"), I("s_nop 7")]
    L = X(f"""
DONE:
s_cmp_eq_u32 s{sFlag}, 0
s_cbranch_scc1 EXIT2
s_waitcnt vmcnt(0) lgkmcnt(0)
s_sub_u32 s{sA}, s{sXw}, {KBASE}
v_add_u32 v{va}, s{sA}, v{vKa}
s_sub_u32 s{sA}, s{sXw}, {VBASE - SLOT}
v_add_u32 v{vb}, s{sA}, v{vVa}
v_and_b32 v{t}, 15, v0
v_lshrrev_b32 v{t+1}, 4, v0
v_lshlrev_b32 v{t}, 8, v{t}
v_lshl_add_u32 v{vg}, v{t+1}, 4, v{t}
v_lshl_add_u32 v{vo}, v{t+1}, 3, v{t}
s_mov_b32 s{sH}, 0
SL_HEAD:
s_lshr_b32 s{sA}, s{sFlag}, s{sH}
s_and_b32 s{sA}, s{sA}, 1
s_cbranch_scc0 SL_NEXTH
s_mov_b32 s{sQt}, 0
SL_TILE:
s_mul_i32 s{sT}, s{sH}, {HEADQ}
s_lshl_b32 s{sA}, s{sQt}, 12
s_add_u32 s{sT}, s{sT}, s{sA}
""")
    L += [I(f"buffer_load_dwordx4 {vr(q + 4*st)}, v{vg}, {srd(sQ)}, s{sT} offen offset:{64*st}") for st in range(4)]
    for r in range(q, q + 16):
        L += X(f"v_lshlrev_b32 v{t}, 16, v{r}\nv_and_b32 v{t+1}, s{sMask}, v{r}\nv_pk_mul_f32 {vr(t,2)}, {vr(t,2)}, s[{sSc}:{sSc+1}]") + [g.cvt(r, t)]
    L += X(f"v_mov_b32 v{t}, 0xff800000\ns_lshl_b32 s{sA}, s{sH}, 18\ns_mov_b32 s{sJ}, 32\nSL_P1:")
    L += dmas("K") + [I("s_waitcnt vmcnt(0)")] + kr + qk("0")
    L += [I(f"v_max3_f32 v{t}, v{t}, v{sb+2*e}, v{sb+2*e+1}") for e in range(4)]
    L += X(f"s_add_u32 s{sA}, s{sA}, 8192\ns_sub_u32 s{sJ}, s{sJ}, 1\ns_cmp_lg_u32 s{sJ}, 0\ns_cbranch_scc1 SL_P1")
    L += X(f"""
v_mov_b32 v{t+1}, v{t}
v_permlane32_swap_b32 v{t}, v{t+1}
v_max_f32 v{t}, v{t}, v{t+1}
v_mov_b32 v{t+1}, v{t}
v_permlane16_swap_b32 v{t}, v{t+1}
""")
    L += [I(f"v_min_f32 v{c+e}, -v{t}, -v{t+1}") for e in range(4)]
    L += [I(f"v_mov_b32 v{r}, 0") for r in list(range(o, o + 32)) + list(range(l, l + 4))]
    L += X(f"s_lshl_b32 s{sA}, s{sH}, 18\ns_mov_b32 s{sJ}, 32\nSL_P2:")
    L += dmas("K") + dmas("V") + [I("s_waitcnt vmcnt(0)")] + kr + qk(vr(c))
    L += [I(f"ds_read_b64_tr_b16 {vr(vf + 4*dt + 2*h, 2)}, v{vb} offset:{h*256 + dt*32}") for dt in range(8) for h in range(2)]
    L += [g.ex(sb + e) for e in range(8)] + [g.cvt(p + e, sb + 2 * e) for e in range(4)]
    L += [I("s_waitcnt lgkmcnt(0)")]
    L += [I(f"{MF} {vr(o + 4*dt)}, {vr(vf + 4*dt)}, {vr(p)}, {vr(o + 4*dt)}") for dt in range(8)]
    L += [I(f"{MF} {vr(l)}, {ar(aONE)}, {vr(p)}, {vr(l)}")]
    L += X(f"s_add_u32 s{sA}, s{sA}, 8192\ns_sub_u32 s{sJ}, s{sJ}, 1\ns_cmp_lg_u32 s{sJ}, 0\ns_cbranch_scc1 SL_P2")
    L += [I(f"v_rcp_f32 v{l}, v{l}")]
    L += [I(f"v_mul_f32 v{r}, v{r}, v{l}") for r in range(o, o + 32)]
    L += [g.cvt(kf + e, o + 2 * e) for e in range(16)]
    L += [I(f"buffer_store_dwordx2 {vr(kf + 2*dt, 2)}, v{vo}, {srd(sO)}, s{sT} offen offset:{32*dt}") for dt in range(8)]
    L += X(f"""
s_waitcnt vmcnt(0)
s_add_u32 s{sQt}, s{sQt}, 1
s_cmp_lt_u32 s{sQt}, s{sNq}
s_cbranch_scc1 SL_TILE
SL_NEXTH:
s_add_u32 s{sH}, s{sH}, 1
s_cmp_lt_u32 s{sH}, 2
s_cbranch_scc1 SL_HEAD
EXIT2:
""")
    L = fix(L)
    assert check(L + L, "slow") == 0
    if cfg.stamps:
        L += X(f"""
s_waitcnt vmcnt(0) lgkmcnt(0)
s_memtime s[{sStamp+8}:{sStamp+9}]
s_memrealtime s[{sStamp+14}:{sStamp+15}]
s_load_dwordx2 s[92:93], s[0:1], 40
s_mov_b32 s94, 0x100000
s_mov_b32 s95, 0x20000
s_lshl_b32 s3, s2, 2
s_add_u32 s3, s3, s{sW}
s_lshl_b32 s3, s3, 7
s_waitcnt lgkmcnt(0)
""")
        for e in range(32): L.append(I(f"v_mov_b32 v{16+e}, s{sStamp+e}"))
        L += X("v_mov_b32 v1, 0\nv_cmp_eq_u32 vcc, 0, v0\ns_and_saveexec_b64 s[96:97], vcc")
        L += [I(f"buffer_store_dwordx4 {vr(16+4*e)}, v1, s[92:95], s3 offen offset:{16*e}") for e in range(8)]
    if cfg.stamps and cfg.dbgwg is not None:
        order = [8, 9, 10, 11, 13, 1, 2, 3, 5, 0, 4]
        L += X(f"s_lshl_b32 s3, s2, 2\ns_add_u32 s3, s3, s{sW}\ns_cmp_lg_u32 s3, {cfg.dbgwg * 4}\ns_cbranch_scc1 EXIT\ns_load_dwordx2 s[92:93], s[0:1], 32\ns_mov_b32 s94, 256\ns_waitcnt vmcnt(0) lgkmcnt(0)")
        for e in range(10): L += X(f"s_sub_u32 s3, s{sStamp+2*order[e+1]}, s{sStamp+2*order[e]}\nv_mov_b32 v{16+e}, s3")
        L += X(f"s_sub_u32 s3, s{sStamp+14}, s{sStamp+12}\nv_mov_b32 v26, s3\ns_sub_u32 s3, s{sStamp+8}, s{sStamp+16}\nv_mov_b32 v27, s3")
        L += [I(f"buffer_store_dwordx4 {vr(16+4*e)}, v1, s[92:95], 0 offen offset:{16*e}") for e in range(3)]
    L += X("EXIT:\ns_endpgm")
    return L

HEAD = """; Fused multi-head attention forward: out = softmax(q k^T / sqrt(128)) v, two heads per workgroup.
; @launch grid=(256,1,1) block=(256,1,1) lds={lds}
.amdgcn_target "amdgcn-amd-amdhsa--gfx950"
.text
.globl standalone__mha_softmax__near_ridge_kernel
.p2align 8
.type standalone__mha_softmax__near_ridge_kernel,@function
standalone__mha_softmax__near_ridge_kernel:
"""
TAIL = """
.section .rodata,"a"
.p2align 6
.amdhsa_kernel standalone__mha_softmax__near_ridge_kernel
  .amdhsa_next_free_vgpr 512
  .amdhsa_next_free_sgpr 102
  .amdhsa_accum_offset 256
  .amdhsa_group_segment_fixed_size 0
  .amdhsa_kernarg_size 48
  .amdhsa_user_sgpr_count 2
  .amdhsa_user_sgpr_kernarg_segment_ptr 1
  .amdhsa_system_sgpr_workgroup_id_x 1
.end_amdhsa_kernel
"""
def build(name, **kw):
    cfg = Cfg(**kw)
    cs = common_start(cfg)
    code = cs + Gen(cfg, 6).path(cs) + Gen(cfg, 5).path(cs) + slow(cfg)
    open(name, "w").write(HEAD.format(lds=LDS) + "\n".join(("" if x.kind == "label" else "  ") + x.text for x in code) + TAIL)

if __name__ == "__main__":
    build("v1_tr.s", omode="trickle")
    build("v1_bu.s", omode="burst")
    build("v1_tr_st.s", omode="trickle", stamps=True)
    build("v1_bu_st.s", omode="burst", stamps=True)
    build("v1_tr_dbg.s", omode="trickle", stamps=True, dbgwg=100)
    build("v1_tr_dbg2.s", omode="trickle", stamps=True, dbgwg=7)
```
